```python
import torch

def _softmax(x, axis=-1):
    return torch.softmax(x, dim=axis)
def _gelu(x):
    return torch.nn.functional.gelu(x, approximate="tanh")
def _silu(x):
    return torch.nn.functional.silu(x)
def _sigmoid(x):
    return torch.sigmoid(x)
def _layernorm(x, axis=-1, eps=1e-5):
    m = x.mean(dim=axis, keepdim=True)
    v = x.var(dim=axis, keepdim=True, unbiased=False)
    return (x - m) / torch.sqrt(v + eps)
def _scatter_add(tgt, idx, src, axis=0):
    return tgt.clone().index_add_(axis, idx, src)
def _segment_sum(src, seg, n):
    out = torch.zeros((n,) + src.shape[1:], dtype=src.dtype)
    return out.index_add_(0, seg, src)
def _pad(x, pw):
    flat = tuple(v for pair in reversed(pw) for v in pair)
    return torch.nn.functional.pad(x, flat)

kernel_name = 'concat_heads__ssm_conv_s5__compressed_kv_cla__prompt'

def setup_inputs():

    _w = (lambda a: (lambda t: t.to(torch.bfloat16) if t.is_floating_point() else t)(torch.as_tensor(a)))
    def _A_setup():
        B, S, D = 1, 2048, 512
        P = D
        Lambda_re = -0.5 * (lambda _x: torch.exp(torch.as_tensor(_x)))((lambda *s: torch.randn(*s, dtype=torch.bfloat16) * 0.2)(P))
        Lambda_im = (lambda *s: torch.randn(*s, dtype=torch.bfloat16) * 0.4)(P) * 1.0
        B_re = (lambda *s: torch.randn(*s, dtype=torch.bfloat16) * 0.2)(P, D) * (D ** -0.5)
        B_im = (lambda *s: torch.randn(*s, dtype=torch.bfloat16) * 0.2)(P, D) * (D ** -0.5)
        C_re = (lambda *s: torch.randn(*s, dtype=torch.bfloat16) * 0.2)(D, P) * (P ** -0.5)
        C_im = (lambda *s: torch.randn(*s, dtype=torch.bfloat16) * 0.2)(D, P) * (P ** -0.5)
        log_dt = (lambda *s: torch.randn(*s, dtype=torch.bfloat16) * 0.2)(P) * 0.3 - 2.0
        Dskip = (lambda *s: torch.randn(*s, dtype=torch.bfloat16) * 0.05)(D)
        return {
            "x": _w((lambda *s: torch.randn(*s, dtype=torch.bfloat16) * 0.05)(B, S, D)),
            "Lambda_re": _w(Lambda_re),
            "Lambda_im": _w(Lambda_im),
            "B_re": _w(B_re),
            "B_im": _w(B_im),
            "C_re": _w(C_re),
            "C_im": _w(C_im),
            "log_dt": _w(log_dt),
            "Dskip": _w(Dskip),
        }
    _A_in = _A_setup()

    def _B_setup():
        B, H, Sq, Sk, D, M = 1, 32, 2048, 2048, 128, 512
        Dc = 4 * D
        return {
            "x": _w((lambda *s: torch.randn(*s, dtype=torch.bfloat16) * 3.2)(B, Sq, M)),
            "c_kv": _w((lambda *s: torch.randn(*s, dtype=torch.bfloat16) * 0.1)(B, Sk, Dc)),
            "w_q": _w((lambda *s: torch.randn(*s, dtype=torch.bfloat16) * 6.4)(M, H, D) * (M ** -0.5)),
            "w_uk": _w((lambda *s: torch.randn(*s, dtype=torch.bfloat16) * 6.4)(Dc, H, D) * (Dc ** -0.5)),
            "w_uv": _w((lambda *s: torch.randn(*s, dtype=torch.bfloat16) * 0.1)(Dc, H, D) * (Dc ** -0.5)),
            "w_o": _w((lambda *s: torch.randn(*s, dtype=torch.bfloat16) * 0.1)(H, D, M) * ((H * D) ** -0.5)),
        }
    _B_in = _B_setup()

    return {
        "A_x": _A_in["x"],
        "A_Lambda_re": _A_in["Lambda_re"],
        "A_Lambda_im": _A_in["Lambda_im"],
        "A_B_re": _A_in["B_re"],
        "A_B_im": _A_in["B_im"],
        "A_C_re": _A_in["C_re"],
        "A_C_im": _A_in["C_im"],
        "A_log_dt": _A_in["log_dt"],
        "A_Dskip": _A_in["Dskip"],
        "B_x": _B_in["x"],
        "B_c_kv": _B_in["c_kv"],
        "B_w_q": _B_in["w_q"],
        "B_w_uk": _B_in["w_uk"],
        "B_w_uv": _B_in["w_uv"],
        "B_w_o": _B_in["w_o"],
    }

def reference(A_x, A_Lambda_re, A_Lambda_im, A_B_re, A_B_im, A_C_re, A_C_im, A_log_dt, A_Dskip, B_x, B_c_kv, B_w_q, B_w_uk, B_w_uv, B_w_o):
    def _A_ref(x, Lambda_re, Lambda_im, B_re, B_im, C_re, C_im, log_dt, Dskip):
        Bsz, L, H = x.shape
        Lam = Lambda_re + 1j * Lambda_im
        Bmat = B_re + 1j * B_im
        Cmat = C_re + 1j * C_im
        dt = torch.exp(log_dt)
        Lam_bar = torch.exp(dt * Lam)
        B_bar = ((Lam_bar - 1.0) / Lam)[:, None] * Bmat
        Bu = torch.einsum("bld,pd->blp", x + 0j, B_bar)
        h = torch.zeros_like(Bu[:, 0, :])
        hs = []
        for t in range(L):
            h = Lam_bar[None, :] * h + Bu[:, t, :]
            hs.append(h)
        hseq = torch.stack(hs, 1)
        y = 2.0 * torch.einsum("blp,dp->bld", hseq, Cmat).real + x * Dskip[None, None, :]
        return y

    def _B_ref(x, c_kv, w_q, w_uk, w_uv, w_o):
        B, Sq, M = x.shape[0], x.shape[1], x.shape[2]
        Sk = c_kv.shape[1]
        H, D = w_q.shape[1], w_q.shape[2]
        q = torch.einsum("bqm,mhd->bhqd", x, w_q)
        k = torch.einsum("bkc,chd->bhkd", c_kv, w_uk)
        v = torch.einsum("bkc,chd->bhkd", c_kv, w_uv)
        scores = torch.einsum("bhqd,bhkd->bhqk", q, k) * (D ** -0.5)
        off = Sk - Sq
        qi = torch.arange(Sq)[:, None]
        kj = torch.arange(Sk)[None, :]
        cmask = kj <= (qi + off)
        scores = torch.where(cmask[None, None], scores, -1e9)
        p = _softmax(scores, axis=-1)
        ctx = torch.einsum("bhqk,bhkd->bhqd", p, v)
        return torch.einsum("bhqd,hdm->bqm", ctx, w_o)

    a = _A_ref(A_x, A_Lambda_re, A_Lambda_im, A_B_re, A_B_im, A_C_re, A_C_im, A_log_dt, A_Dskip)
    b = _B_ref(B_x, B_c_kv, B_w_q, B_w_uk, B_w_uv, B_w_o)
    return torch.concatenate([a, b], axis=-1)
```

```python
import re, random

REG_RE = re.compile(r'^(-|abs\()?([vas])(?:(\d+)|\[(\d+):(\d+)\])\)?$')
def regs_of(op):
    op = op.strip()
    if op in ('vcc',): return {('s','vcc')}
    if op == 'exec': return {('s','exec')}
    if op == 'm0': return {('s','m0')}
    m = REG_RE.match(op)
    if not m: return set()
    f = m.group(2)
    if m.group(3) is not None: return {(f,int(m.group(3)))}
    return {(f,i) for i in range(int(m.group(4)), int(m.group(5))+1)}

TRANS = ('v_exp_f32','v_log_f32','v_rcp_f32','v_rsq_f32','v_sqrt_f32','v_sin_f32','v_cos_f32')
class Ins:
    __slots__=('text','op','kind','rd','wr','ops','cin')
    def __init__(s, text):
        s.text = text
        t = text.split(';')[0].strip()
        if t.endswith(':') or t.startswith('.') or not t:
            s.op=t; s.kind='label'; s.rd=set(); s.wr=set(); s.ops=[]; s.cin=set(); return
        parts = t.split(None,1)
        s.op = op = parts[0]
        rest = parts[1] if len(parts)>1 else ''
        ops = [x.strip() for x in rest.split(',')] if rest else []
        mods = []
        if ops:
            last = ops[-1].split()
            ops[-1] = last[0]; mods = last[1:]
        s.ops = ops
        R = [regs_of(o) for o in ops]
        U = lambda l: set().union(*l) if l else set()
        s.cin = set()
        if op.startswith('v_mfma'):
            s.kind='mfma'; s.wr=R[0]; s.rd=U(R[1:]); s.cin=R[3]
        elif op.startswith('ds_read'):
            s.kind='dsr'; s.wr=R[0]; s.rd=U(R[1:])
        elif op.startswith('ds_write'):
            s.kind='dsw'; s.wr=set(); s.rd=U(R)
        elif op.startswith('buffer_load') or op.startswith('global_load'):
            if 'lds' in mods:
                s.kind='dma'; s.wr=set(); s.rd=U(R)|{('s','m0')}
            else:
                s.kind='vld'; s.wr=R[0]; s.rd=U(R[1:])
        elif op.startswith('buffer_store') or op.startswith('global_store'):
            s.kind='vst'; s.wr=set(); s.rd=U(R)
        elif op.startswith('buffer_atomic'):
            s.kind='vld' if 'sc0' in mods else 'vst'; s.wr=R[0] if 'sc0' in mods else set(); s.rd=U(R)
        elif op.startswith('global_atomic'):
            if 'sc0' in mods: s.kind='vld'; s.wr=R[0]; s.rd=U(R[1:])
            else: s.kind='vst'; s.wr=set(); s.rd=U(R)
        elif op in ('buffer_inv','buffer_wbl2'):
            s.kind='vst'; s.wr=set(); s.rd=set()
        elif op=='s_waitcnt':
            s.kind='wait'; s.wr=set(); s.rd=set()
        elif op=='s_barrier':
            s.kind='bar'; s.wr=set(); s.rd=set()
        elif op=='s_nop':
            s.kind='nop'; s.wr=set(); s.rd=set()
        elif op.startswith('s_cbranch') or op in ('s_branch','s_endpgm','s_setprio','s_sleep'):
            s.kind='br'; s.wr=set(); s.rd={('s','vcc')} if 'vcc' in op else set()
        elif op.startswith('s_load') or op.startswith('s_mem'):
            s.kind='smem'; s.wr=R[0]; s.rd=U(R[1:])
        elif op.startswith('s_cmp') or op.startswith('s_bitcmp'):
            s.kind='salu'; s.wr=set(); s.rd=U(R)
        elif op.startswith('s_'):
            s.kind='salu'; s.wr=R[0] if R else set(); s.rd=U(R[1:])
        elif op.startswith('v_'):
            s.kind='trans' if op.replace('_e32','').replace('_e64','') in TRANS else 'valu'
            s.wr=R[0]; s.rd=U(R[1:])
            if op.startswith('v_fmac') or op.startswith('v_pk_fmac'): s.rd|=R[0]
            if op.startswith('v_permlane') and 'swap' in op: s.wr=R[0]|R[1]; s.rd=R[0]|R[1]
            if op.startswith('v_add_co') or op.startswith('v_addc_co') or op.startswith('v_sub_co'):
                s.wr=R[0]|R[1]; s.rd=U(R[2:])
        else:
            raise Exception('unknown op '+text)
    def states(s):
        if s.kind=='label': return 0
        if s.kind=='nop': return int(s.ops[0])+1
        return 1

def isv(rs): return {r for r in rs if r[0] in 'va'}
def iss(rs): return {r for r in rs if r[0]=='s'}

def need_states(p, c):
    n=0
    pv = p.kind in ('valu','trans'); cv = c.kind in ('valu','trans')
    cmem = c.kind in ('dsr','dsw','dma','vld','vst')
    if pv:
        if c.kind=='mfma' and isv(p.wr)&c.rd: n=max(n,2)
        if p.kind=='trans' and c.kind=='valu' and p.wr&c.rd: n=max(n,1)
        if cv and iss(p.wr)&c.rd: n=max(n,2)
        if c.kind in ('dma','vld','vst') and iss(p.wr)&c.rd: n=max(n,5)
        if cv and c.op.startswith('v_permlane') and p.wr&c.rd: n=max(n,2)
        if cv and c.op.startswith('v_read') and isv(p.wr)&c.rd: n=max(n,1)
        if cv and 'dpp' in c.text and p.wr&c.rd: n=max(n,2)
        if c.kind=='salu' and iss(p.wr)&c.rd: n=max(n,1)
    if p.kind=='mfma':
        assert '16x16x32' in p.op
        if c.kind=='mfma':
            if p.wr & (regs_of(c.ops[1])|regs_of(c.ops[2])): n=max(n,8)
            if p.wr & c.cin and p.wr!=c.cin: n=max(n,6)
        if (cv or cmem) and p.wr&(c.rd|c.wr): n=max(n,8)
        if cv and p.cin&c.wr: n=max(n,3)
    if p.kind=='salu' and ('s','m0') in p.wr and c.kind=='dma': n=max(n,1)
    if p.kind=='vst' and ('x4' in p.op or 'x3' in p.op):
        d = regs_of(p.ops[0]) if p.op.startswith('buffer') else regs_of(p.ops[1])
        if d & c.wr and c.kind not in ('dsr','vld'): n=max(n,2)
    if p.kind=='dsw' and 'b128' in p.op and regs_of(p.ops[1])&c.wr and cv: n=max(n,2)
    return n

def check_hazards(lines, name=''):
    ins=[l if isinstance(l,Ins) else Ins(l) for l in lines]
    errs=[]
    for i,c in enumerate(ins):
        if c.kind in ('label','nop','wait','bar'): continue
        d=0
        for j in range(i-1,max(-1,i-14),-1):
            p=ins[j]
            n=need_states(p,c)
            if n>d: errs.append(f"{name}: hazard need {n} have {d}: [{j}] {p.text}  ->  [{i}] {c.text}")
            d+=p.states()
            if d>=9: break
    return errs

def fix_hazards(lines):
    out=[]
    for l in lines:
        c=Ins(l)
        if c.kind not in ('label','nop','wait','bar'):
            d=0; add=0
            for p in reversed(out[-14:]):
                n=need_states(p,c)
                add=max(add,n-d)
                d+=p.states()
                if d>=9: break
            if add>0: out.append(Ins(f"s_nop {add-1}"))
        out.append(c)
    return [o.text for o in out]

WAIT_RE=re.compile(r'(vmcnt|lgkmcnt)\((\d+)\)')
def check_waits(lines, name=''):
    ins=[l if isinstance(l,Ins) else Ins(l) for l in lines]
    ds=[]; vm=[]; errs=[]; smem=False
    for i,c in enumerate(ins):
        if c.kind=='wait':
            for k,n in WAIT_RE.findall(c.text):
                n=int(n)
                if k=='lgkmcnt':
                    if smem and n>0: pass
                    else:
                        ds=ds[len(ds)-n:] if n<len(ds) and n>0 else ([] if n==0 else ds)
                        if n==0: smem=False
                else: vm=vm[len(vm)-n:] if n<len(vm) and n>0 else ([] if n==0 else vm)
            continue
        use=c.rd|c.wr
        for q in (ds,vm):
            for p in q:
                if p.wr&use and not (p.kind==c.kind and not (p.wr&c.rd)):
                    errs.append(f"{name}: unwaited: {p.text} -> [{i}] {c.text}")
        if c.kind in ('dsr','dsw'): ds.append(c)
        if c.kind=='smem': ds.append(c); smem=True
        if c.kind in ('dma','vld','vst'): vm.append(c)
        if len(vm)>63: errs.append(f"{name}: vmcnt overflow at [{i}] {c.text}")
    return errs

class Gap:
    def __init__(s): s.sh=None; s.m=None; s.d=[]; s.v=[]; s.post=[]
def _match(items, slots_of):
    owner={}
    def tryi(i,seen):
        for s in slots_of(i):
            if s in seen: continue
            seen.add(s)
            if s not in owner or tryi(owner[s],seen):
                owner[s]=i; return True
        return False
    for i in items:
        if not tryi(i,set()): return None
    return {i:s for s,i in owner.items()}

def place(n, fillers, tries=400, seed=0, cyclic=True, good=40):
    rnd=random.Random(seed)
    big=[i for i,f in enumerate(fillers) if f[0] in 'em']
    small=[i for i,f in enumerate(fillers) if f[0] in 'dv']
    sc=[i for i,f in enumerate(fillers) if f[0]=='s']
    for f in fillers:
        assert f[2]<=f[3], f
        if not cyclic: assert 0<=f[2] and f[3]<n, f
    fixed_s={f[2]%n for f in fillers if f[0]=='s' and f[2]==f[3]}
    best=None
    for tr in range(tries):
        def bs(i):
            c=[g%n for g in range(fillers[i][2],fillers[i][3]+1)]
            if fillers[i][0]=='m': c=[g for g in c if g not in fixed_s]
            if tr: rnd.shuffle(c)
            return c
        cache={i:bs(i) for i in big}
        mb=_match(sorted(big,key=lambda i:len(cache[i])), lambda i:cache[i])
        if mb is None: raise Exception("big items infeasible")
        taken=set(mb.values())
        mg=set(mb[i] for i in big if fillers[i][0]=='m')
        def ss(i):
            k,_,lo,hi=fillers[i][:4]
            c=[g%n for g in range(lo,hi+1) if g%n not in taken]
            a,b=(0,1) if k=='d' else (1,0)
            return [(g,a) for g in c]+[(g,b) for g in c]
        cs={i:ss(i) for i in small}
        ms=_match(small, lambda i:cs[i])
        if ms is None: continue
        msc=_match(sc, lambda i:[g%n for g in range(fillers[i][2],fillers[i][3]+1) if g%n not in mg])
        if msc is None: continue
        cnt={}
        for i in small:
            key=(ms[i][0],fillers[i][0]); cnt[key]=cnt.get(key,0)+1
        ndd=sum(1 for v in cnt.values() if v>1)
        if best is None or ndd<best[0]: best=(ndd,mb,ms,msc)
        if ndd==0 or tr>good: break
    if best is None: raise Exception("cannot schedule")
    ndd,mb,ms,msc=best
    res={}
    def unwrap(i,g):
        lo=fillers[i][2]
        while g<lo: g+=n
        while g-n>=lo: g-=n
        return g
    for i,g in mb.items(): res[i]=unwrap(i,g)
    for i,(g,_) in ms.items(): res[i]=unwrap(i,g)
    for i,g in msc.items(): res[i]=unwrap(i,g)
    ch={}
    for i,f in enumerate(fillers):
        if len(f)>4 and f[4] is not None: ch.setdefault((f[4],f[0]),[]).append(i)
    for c,l in ch.items():
        ps=sorted(res[i] for i in l)
        for i,p in zip(l,ps):
            assert fillers[i][2]<=p<=fillers[i][3],(fillers[i],p)
            res[i]=p
    gaps=[Gap() for _ in range(n)]
    for i,f in enumerate(fillers):
        G=gaps[res[i]%n]; k=f[0]; key=(-(res[i]//n),i)
        if k=='s': G.sh=f[1]
        elif k=='m': G.m=f[1]
        elif k=='d': G.d.append((key,f[1]))
        else: G.v.append((key,f[1]))
    return gaps,res

def flat(x):
    return x if isinstance(x,list) else [x]
def emit(mf,gaps):
    out=[]
    for m,G in zip(mf,gaps):
        out.append(m)
        if G.sh: out+=flat(G.sh)
        if G.m: out+=flat(G.m)
        for _,t in sorted(G.d): out+=flat(t)
        for _,t in sorted(G.v): out+=flat(t)
        out+=G.post
    return out

def insert_lgkm(mf, gaps, pending=(), cyclic=False, age=5):
    n=len(mf)
    seq=[]
    if cyclic:
        for g in range(n):
            for _,t in sorted(gaps[g].d):
                for tt in flat(t): seq.append((g-n,Ins(tt)))
    else:
        seq=[(-100,Ins(t)) for t in pending]
    done=0
    if cyclic: done=0
    def existing_wait(G):
        if G.sh:
            for t in flat(G.sh):
                m=re.search(r'lgkmcnt\((\d+)\)',t)
                if m: return int(m.group(1))
        return None
    for m in range(n):
        I=Ins(mf[m])
        need=-1
        for k in range(done,len(seq)):
            if seq[k][1].wr & I.rd: need=k
        if need>=0:
            loc=None
            for g in range(m-1,max(m-4,-1),-1):
                if seq[need][0]>=g: break
                if gaps[g].sh is None and gaps[g].m is None: loc=g; break
            if loc is not None:
                issued=len([1 for k in range(len(seq)) if seq[k][0]<loc])
                cover=need
                for k in range(need,issued):
                    if seq[k][0]<=loc-age: cover=k
                c=min(issued-1-cover,15)
                gaps[loc].sh=f"s_waitcnt lgkmcnt({c})"
                done=issued-c
            else:
                assert m>0 or cyclic, "need wait before first mfma"
                issued=len(seq)
                cover=need
                for k in range(need,issued):
                    if seq[k][0]<=m-1-age: cover=k
                c=min(issued-1-cover,15)
                gaps[(m-1)%n].post.append(f"s_waitcnt lgkmcnt({c})")
                done=issued-c
        w=existing_wait(gaps[m])
        if w is not None: done=max(done,len(seq)-w)
        for _,t in sorted(gaps[m].d):
            for tt in flat(t): seq.append((m,Ins(tt)))
    return [s[1].text for s in seq[done:]]

def r(f,s,n=1): return f"{f}{s}" if n==1 else f"{f}[{s}:{s+n-1}]"
def mf16(d,a,b,c): return f"v_mfma_f32_16x16x32_bf16 {d}, {a}, {b}, {c}"
import struct
def f2u(x): return struct.unpack('<I',struct.pack('<f',x))[0]
def fh(x): return hex(f2u(x))
```

```python
from asmlib import *
KA=dict(xa=0,lre=8,lim=16,bre=24,bim=32,cre=40,cim=48,ldt=56,dsk=64,xb=72,ckv=80,wq=88,wuk=96,wuv=104,wo=112,out=120,dbg=128,ws=136)
MB=1<<20
WS_KV=0; WS_CTX=32*MB; WS_H=48*MB; WS_WO=52*MB; WS_C=56*MB; WS_E=57*MB; WS_END=58*MB
B0=96.0
VSCALE=2.0**64
THR=2.0**-30

class Code:
    def __init__(s): s.L=[]
    def __call__(s,*t):
        for x in t:
            if isinstance(x,(list,tuple)): s.L.extend(x)
            else: s.L.append(x)
    def srd(s, d, base, nbytes):
        s(f"s_mov_b32 s{d}, s{base}", f"s_and_b32 s{d+1}, s{base+1}, 0xffff", f"s_mov_b32 s{d+2}, {hex(nbytes)}", f"s_mov_b32 s{d+3}, 0x20000")

def kernel_head(name):
    return [f".globl {name}",".p2align 8",f".type {name},@function",f"{name}:"]
def kernel_desc(name):
    return ['.section .rodata,"a"',".p2align 6",f".amdhsa_kernel {name}","  .amdhsa_next_free_vgpr 512","  .amdhsa_next_free_sgpr 102",
            "  .amdhsa_accum_offset 256","  .amdhsa_group_segment_fixed_size 0","  .amdhsa_kernarg_size 144","  .amdhsa_user_sgpr_count 2",
            "  .amdhsa_user_sgpr_kernarg_segment_ptr 1","  .amdhsa_system_sgpr_workgroup_id_x 1",".end_amdhsa_kernel",".text"]
def cmul(dr,di,ar,ai,br,bi,cr=None,ci=None):
    if cr is None:
        return [f"v_mul_f32 v{dr}, v{ar}, v{br}", f"v_mul_f32 v{di}, v{ar}, v{bi}",
                f"v_fma_f32 v{dr}, -v{ai}, v{bi}, v{dr}", f"v_fma_f32 v{di}, v{ai}, v{br}, v{di}"]
    return [f"v_fma_f32 v{dr}, v{ar}, v{br}, v{cr}", f"v_fma_f32 v{di}, v{ar}, v{bi}, v{ci}",
            f"v_fma_f32 v{dr}, -v{ai}, v{bi}, v{dr}", f"v_fma_f32 v{di}, v{ai}, v{br}, v{di}"]
def verify(lines,name):
    e=check_hazards(lines,name)+check_waits(lines,name)
    if e:
        print("\n".join(e[:30])); raise Exception(f"{name}: {len(e)} problems")

def code_prefetch(lbl, sp, vt, vd, n):
    o=[f"s_getpc_b64 s[{sp}:{sp+1}]", f"{lbl}:", f"v_lshlrev_b32 v{vt}, 7, v0"]
    for i in range(n):
        if i: o.append(f"v_add_u32 v{vt}, 0x8000, v{vt}")
        o+=[f"v_min_u32 v{vt}, L_text_end-{lbl}-4, v{vt}", f"global_load_dword v{vd}, v{vt}, s[{sp}:{sp+1}]"]
    return o
```

```python
import sys, importlib
from common import *
NAME='concat_heads__ssm_conv_s5__compressed_kv_cla__prompt'
def build(kernels, path):
    ref=open(f'cdna_kernels/{NAME}.s.ref').read().split('\n')
    head=[l for l in ref if l.startswith(';') and '@launch' not in l and 'Override launch' not in l and 'grid=ceil' not in l]
    L=list(head)
    mods=[importlib.import_module(k) for k in kernels]
    for k,m in zip(kernels,mods):
        L.append(f"; @launch kernel={k}_kernel grid=(256,1,1) block=(256,1,1) lds={m.LDS}")
    L+=['.amdgcn_target "amdgcn-amd-amdhsa--gfx950"','.text']
    for k,m in zip(kernels,mods): L+=m.gen(f'{k}_kernel')
    L+=["s_endpgm","L_text_end:"]
    open(path,'w').write("\n".join(L)+"\n")
if __name__=='__main__':
    build(sys.argv[2:], sys.argv[1])
```

```python
import re, random

REG_RE = re.compile(r'^(-|abs\()?([vas])(?:(\d+)|\[(\d+):(\d+)\])\)?$')
def regs_of(op):
    op = op.strip()
    if op in ('vcc',): return {('s','vcc')}
    if op == 'exec': return {('s','exec')}
    if op == 'm0': return {('s','m0')}
    m = REG_RE.match(op)
    if not m: return set()
    f = m.group(2)
    if m.group(3) is not None: return {(f,int(m.group(3)))}
    return {(f,i) for i in range(int(m.group(4)), int(m.group(5))+1)}

TRANS = ('v_exp_f32','v_log_f32','v_rcp_f32','v_rsq_f32','v_sqrt_f32','v_sin_f32','v_cos_f32')
class Ins:
    __slots__=('text','op','kind','rd','wr','ops','cin')
    def __init__(s, text):
        s.text = text
        t = text.split(';')[0].strip()
        if t.endswith(':') or t.startswith('.') or not t:
            s.op=t; s.kind='label'; s.rd=set(); s.wr=set(); s.ops=[]; s.cin=set(); return
        parts = t.split(None,1)
        s.op = op = parts[0]
        rest = parts[1] if len(parts)>1 else ''
        ops = [x.strip() for x in rest.split(',')] if rest else []
        mods = []
        if ops:
            last = ops[-1].split()
            ops[-1] = last[0]; mods = last[1:]
        s.ops = ops
        R = [regs_of(o) for o in ops]
        U = lambda l: set().union(*l) if l else set()
        s.cin = set()
        if op.startswith('v_mfma'):
            s.kind='mfma'; s.wr=R[0]; s.rd=U(R[1:]); s.cin=R[3]
        elif op.startswith('ds_read'):
            s.kind='dsr'; s.wr=R[0]; s.rd=U(R[1:])
        elif op.startswith('ds_write'):
            s.kind='dsw'; s.wr=set(); s.rd=U(R)
        elif op.startswith('buffer_load') or op.startswith('global_load'):
            if 'lds' in mods:
                s.kind='dma'; s.wr=set(); s.rd=U(R)|{('s','m0')}
            else:
                s.kind='vld'; s.wr=R[0]; s.rd=U(R[1:])
        elif op.startswith('buffer_store') or op.startswith('global_store'):
            s.kind='vst'; s.wr=set(); s.rd=U(R)
        elif op.startswith('buffer_atomic'):
            s.kind='vld' if 'sc0' in mods else 'vst'; s.wr=R[0] if 'sc0' in mods else set(); s.rd=U(R)
        elif op.startswith('global_atomic'):
            if 'sc0' in mods: s.kind='vld'; s.wr=R[0]; s.rd=U(R[1:])
            else: s.kind='vst'; s.wr=set(); s.rd=U(R)
        elif op in ('buffer_inv','buffer_wbl2'):
            s.kind='vst'; s.wr=set(); s.rd=set()
        elif op=='s_waitcnt':
            s.kind='wait'; s.wr=set(); s.rd=set()
        elif op=='s_barrier':
            s.kind='bar'; s.wr=set(); s.rd=set()
        elif op=='s_nop':
            s.kind='nop'; s.wr=set(); s.rd=set()
        elif op.startswith('s_cbranch') or op in ('s_branch','s_endpgm','s_setprio','s_sleep'):
            s.kind='br'; s.wr=set(); s.rd={('s','vcc')} if 'vcc' in op else set()
        elif op.startswith('s_load') or op.startswith('s_mem'):
            s.kind='smem'; s.wr=R[0]; s.rd=U(R[1:])
        elif op.startswith('s_cmp') or op.startswith('s_bitcmp'):
            s.kind='salu'; s.wr=set(); s.rd=U(R)
        elif op.startswith('s_'):
            s.kind='salu'; s.wr=R[0] if R else set(); s.rd=U(R[1:])
        elif op.startswith('v_'):
            s.kind='trans' if op.replace('_e32','').replace('_e64','') in TRANS else 'valu'
            s.wr=R[0]; s.rd=U(R[1:])
            if op.startswith('v_fmac') or op.startswith('v_pk_fmac'): s.rd|=R[0]
            if op.startswith('v_permlane') and 'swap' in op: s.wr=R[0]|R[1]; s.rd=R[0]|R[1]
            if op.startswith('v_add_co') or op.startswith('v_addc_co') or op.startswith('v_sub_co'):
                s.wr=R[0]|R[1]; s.rd=U(R[2:])
        else:
            raise Exception('unknown op '+text)
    def states(s):
        if s.kind=='label': return 0
        if s.kind=='nop': return int(s.ops[0])+1
        return 1

def isv(rs): return {r for r in rs if r[0] in 'va'}
def iss(rs): return {r for r in rs if r[0]=='s'}

def need_states(p, c):
    n=0
    pv = p.kind in ('valu','trans'); cv = c.kind in ('valu','trans')
    cmem = c.kind in ('dsr','dsw','dma','vld','vst')
    if pv:
        if c.kind=='mfma' and isv(p.wr)&c.rd: n=max(n,2)
        if p.kind=='trans' and c.kind=='valu' and p.wr&c.rd: n=max(n,1)
        if cv and iss(p.wr)&c.rd: n=max(n,2)
        if c.kind in ('dma','vld','vst') and iss(p.wr)&c.rd: n=max(n,5)
        if cv and c.op.startswith('v_permlane') and p.wr&c.rd: n=max(n,2)
        if cv and c.op.startswith('v_read') and isv(p.wr)&c.rd: n=max(n,1)
        if cv and 'dpp' in c.text and p.wr&c.rd: n=max(n,2)
        if c.kind=='salu' and iss(p.wr)&c.rd: n=max(n,1)
    if p.kind=='mfma':
        assert '16x16x32' in p.op
        if c.kind=='mfma':
            if p.wr & (regs_of(c.ops[1])|regs_of(c.ops[2])): n=max(n,8)
            if p.wr & c.cin and p.wr!=c.cin: n=max(n,6)
        if (cv or cmem) and p.wr&(c.rd|c.wr): n=max(n,8)
        if cv and p.cin&c.wr: n=max(n,3)
    if p.kind=='salu' and ('s','m0') in p.wr and c.kind=='dma': n=max(n,1)
    if p.kind=='vst' and ('x4' in p.op or 'x3' in p.op):
        d = regs_of(p.ops[0]) if p.op.startswith('buffer') else regs_of(p.ops[1])
        if d & c.wr and c.kind not in ('dsr','vld'): n=max(n,2)
    if p.kind=='dsw' and 'b128' in p.op and regs_of(p.ops[1])&c.wr and cv: n=max(n,2)
    return n

def check_hazards(lines, name=''):
    ins=[l if isinstance(l,Ins) else Ins(l) for l in lines]
    errs=[]
    for i,c in enumerate(ins):
        if c.kind in ('label','nop','wait','bar'): continue
        d=0
        for j in range(i-1,max(-1,i-14),-1):
            p=ins[j]
            n=need_states(p,c)
            if n>d: errs.append(f"{name}: hazard need {n} have {d}: [{j}] {p.text}  ->  [{i}] {c.text}")
            d+=p.states()
            if d>=9: break
    return errs

def fix_hazards(lines):
    out=[]
    for l in lines:
        c=Ins(l)
        if c.kind not in ('label','nop','wait','bar'):
            d=0; add=0
            for p in reversed(out[-14:]):
                n=need_states(p,c)
                add=max(add,n-d)
                d+=p.states()
                if d>=9: break
            if add>0: out.append(Ins(f"s_nop {add-1}"))
        out.append(c)
    return [o.text for o in out]

WAIT_RE=re.compile(r'(vmcnt|lgkmcnt)\((\d+)\)')
def check_waits(lines, name=''):
    ins=[l if isinstance(l,Ins) else Ins(l) for l in lines]
    ds=[]; vm=[]; errs=[]; smem=False
    for i,c in enumerate(ins):
        if c.kind=='wait':
            for k,n in WAIT_RE.findall(c.text):
                n=int(n)
                if k=='lgkmcnt':
                    if smem and n>0: pass
                    else:
                        ds=ds[len(ds)-n:] if n<len(ds) and n>0 else ([] if n==0 else ds)
                        if n==0: smem=False
                else: vm=vm[len(vm)-n:] if n<len(vm) and n>0 else ([] if n==0 else vm)
            continue
        use=c.rd|c.wr
        for q in (ds,vm):
            for p in q:
                if p.wr&use and not (p.kind==c.kind and not (p.wr&c.rd)):
                    errs.append(f"{name}: unwaited: {p.text} -> [{i}] {c.text}")
        if c.kind in ('dsr','dsw'): ds.append(c)
        if c.kind=='smem': ds.append(c); smem=True
        if c.kind in ('dma','vld','vst'): vm.append(c)
        if len(vm)>63: errs.append(f"{name}: vmcnt overflow at [{i}] {c.text}")
    return errs

class Gap:
    def __init__(s): s.sh=None; s.m=None; s.d=[]; s.v=[]; s.post=[]
def _match(items, slots_of):
    owner={}
    def tryi(i,seen):
        for s in slots_of(i):
            if s in seen: continue
            seen.add(s)
            if s not in owner or tryi(owner[s],seen):
                owner[s]=i; return True
        return False
    for i in items:
        if not tryi(i,set()): return None
    return {i:s for s,i in owner.items()}

def place(n, fillers, tries=400, seed=0, cyclic=True, good=40):
    rnd=random.Random(seed)
    big=[i for i,f in enumerate(fillers) if f[0] in 'em']
    small=[i for i,f in enumerate(fillers) if f[0] in 'dv']
    sc=[i for i,f in enumerate(fillers) if f[0]=='s']
    for f in fillers:
        assert f[2]<=f[3], f
        if not cyclic: assert 0<=f[2] and f[3]<n, f
    fixed_s={f[2]%n for f in fillers if f[0]=='s' and f[2]==f[3]}
    best=None
    for tr in range(tries):
        def bs(i):
            c=[g%n for g in range(fillers[i][2],fillers[i][3]+1)]
            if fillers[i][0]=='m': c=[g for g in c if g not in fixed_s]
            if tr: rnd.shuffle(c)
            return c
        cache={i:bs(i) for i in big}
        mb=_match(sorted(big,key=lambda i:len(cache[i])), lambda i:cache[i])
        if mb is None: raise Exception("big items infeasible")
        taken=set(mb.values())
        mg=set(mb[i] for i in big if fillers[i][0]=='m')
        def ss(i):
            k,_,lo,hi=fillers[i][:4]
            c=[g%n for g in range(lo,hi+1) if g%n not in taken]
            a,b=(0,1) if k=='d' else (1,0)
            return [(g,a) for g in c]+[(g,b) for g in c]
        cs={i:ss(i) for i in small}
        ms=_match(small, lambda i:cs[i])
        if ms is None: continue
        msc=_match(sc, lambda i:[g%n for g in range(fillers[i][2],fillers[i][3]+1) if g%n not in mg])
        if msc is None: continue
        cnt={}
        for i in small:
            key=(ms[i][0],fillers[i][0]); cnt[key]=cnt.get(key,0)+1
        ndd=sum(1 for v in cnt.values() if v>1)
        if best is None or ndd<best[0]: best=(ndd,mb,ms,msc)
        if ndd==0 or tr>good: break
    if best is None: raise Exception("cannot schedule")
    ndd,mb,ms,msc=best
    res={}
    def unwrap(i,g):
        lo=fillers[i][2]
        while g<lo: g+=n
        while g-n>=lo: g-=n
        return g
    for i,g in mb.items(): res[i]=unwrap(i,g)
    for i,(g,_) in ms.items(): res[i]=unwrap(i,g)
    for i,g in msc.items(): res[i]=unwrap(i,g)
    ch={}
    for i,f in enumerate(fillers):
        if len(f)>4 and f[4] is not None: ch.setdefault((f[4],f[0]),[]).append(i)
    for c,l in ch.items():
        ps=sorted(res[i] for i in l)
        for i,p in zip(l,ps):
            assert fillers[i][2]<=p<=fillers[i][3],(fillers[i],p)
            res[i]=p
    gaps=[Gap() for _ in range(n)]
    for i,f in enumerate(fillers):
        G=gaps[res[i]%n]; k=f[0]; key=(-(res[i]//n),i)
        if k=='s': G.sh=f[1]
        elif k=='m': G.m=f[1]
        elif k=='d': G.d.append((key,f[1]))
        else: G.v.append((key,f[1]))
    return gaps,res

def flat(x):
    return x if isinstance(x,list) else [x]
def emit(mf,gaps):
    out=[]
    for m,G in zip(mf,gaps):
        out.append(m)
        if G.sh: out+=flat(G.sh)
        if G.m: out+=flat(G.m)
        for _,t in sorted(G.d): out+=flat(t)
        for _,t in sorted(G.v): out+=flat(t)
        out+=G.post
    return out

def insert_lgkm(mf, gaps, pending=(), cyclic=False, age=5):
    n=len(mf)
    seq=[]
    if cyclic:
        for g in range(n):
            for _,t in sorted(gaps[g].d):
                for tt in flat(t): seq.append((g-n,Ins(tt)))
    else:
        seq=[(-100,Ins(t)) for t in pending]
    done=0
    if cyclic: done=0
    def existing_wait(G):
        if G.sh:
            for t in flat(G.sh):
                m=re.search(r'lgkmcnt\((\d+)\)',t)
                if m: return int(m.group(1))
        return None
    for m in range(n):
        I=Ins(mf[m])
        need=-1
        for k in range(done,len(seq)):
            if seq[k][1].wr & I.rd: need=k
        if need>=0:
            loc=None
            for g in range(m-1,max(m-4,-1),-1):
                if seq[need][0]>=g: break
                if gaps[g].sh is None and gaps[g].m is None: loc=g; break
            if loc is not None:
                issued=len([1 for k in range(len(seq)) if seq[k][0]<loc])
                cover=need
                for k in range(need,issued):
                    if seq[k][0]<=loc-age: cover=k
                c=min(issued-1-cover,15)
                gaps[loc].sh=f"s_waitcnt lgkmcnt({c})"
                done=issued-c
            else:
                assert m>0 or cyclic, "need wait before first mfma"
                issued=len(seq)
                cover=need
                for k in range(need,issued):
                    if seq[k][0]<=m-1-age: cover=k
                c=min(issued-1-cover,15)
                gaps[(m-1)%n].post.append(f"s_waitcnt lgkmcnt({c})")
                done=issued-c
        w=existing_wait(gaps[m])
        if w is not None: done=max(done,len(seq)-w)
        for _,t in sorted(gaps[m].d):
            for tt in flat(t): seq.append((m,Ins(tt)))
    return [s[1].text for s in seq[done:]]

def r(f,s,n=1): return f"{f}{s}" if n==1 else f"{f}[{s}:{s+n-1}]"
def mf16(d,a,b,c): return f"v_mfma_f32_16x16x32_bf16 {d}, {a}, {b}, {c}"
import struct
def f2u(x): return struct.unpack('<I',struct.pack('<f',x))[0]
def fh(x): return hex(f2u(x))

def kind_of(t):
    if isinstance(t,list): return 'G'
    I=Ins(re.sub(r'@\w+','0',t.split(';')[0]))
    k=I.kind
    if k=='valu': return 'v'
    if k=='trans': return 'e'
    if k=='dsr': return 'd'
    if k=='dsw': return 'D'
    if k in ('dma','vld','vst'): return 'm'
    return 's'
_seq=[0]
def used(G):
    if G.m is not None: return 2
    u=len(G.d)
    for _,t in G.v: u+= 2 if (not isinstance(t,list) and kind_of(t)=='e') else 1
    for _,t in G.d:
        if kind_of(t)=='D': u+=1
    return u+2*bool(G.post)
def weave(gaps, q, lo=0, hi=None, cap=2, loose=False):
    hi=len(gaps) if hi is None else hi
    q=list(q); g=lo; rank=-1
    while q and g<hi:
        t=q[0]
        if isinstance(t,tuple):
            ng = t[1] if t[0]=='after' else g+t[1]
            if ng>g: g=ng; rank=-1
            q.pop(0); continue
        G=gaps[g]; k=kind_of(t); u=used(G); ok=False
        _seq[0]+=1; key=(1,_seq[0])
        if k=='s':
            if G.sh is None and G.m is None and rank<0: G.sh=t; rank=0; ok=True
            elif u<cap or (u<2 and rank<0): G.v.append((key,t)); rank=3; ok=True
        elif k=='m':
            if (u==0 or (loose and u==1 and len(G.d)==1)) and G.sh is None and rank<0: G.m=t; rank=4; ok=True
        elif k=='d':
            if u<cap and rank<=2 and (len(G.d)==0 or loose): G.d.append((key,t)); rank=2; ok=True
        elif k=='D':
            if u==0 and rank<=2: G.d.append((key,t)); rank=4; ok=True
        elif k=='v':
            if u<cap and rank<=3: G.v.append((key,t)); rank=3; ok=True
        elif k=='e':
            if u==0 and rank<=3: G.v.append((key,t)); rank=4; ok=True
        elif k=='G':
            if u==0: G.post=list(t); rank=4; ok=True
        if ok: q.pop(0)
        else: g+=1; rank=-1
    return q
def flush(q):
    o=[]
    for t in q:
        if isinstance(t,tuple): continue
        o+=flat(t)
    return o
def resolve_waits(L):
    out=[]; vm=[]; ds=[]
    for t in L:
        if t.startswith('s_waitcnt') and '@' in t.split(';')[0]:
            def rep(m):
                q,mx=(vm,63) if m.group(1)=='vmcnt' else (ds,15)
                n=mx
                for tag in m.group(2).split(','):
                    idx=[i for i,x in enumerate(q) if x==tag.strip()[1:]]
                    assert idx,(t,tag)
                    n=min(n,len(q)-1-idx[-1])
                return f"{m.group(1)}({n})"
            t=re.sub(r'(vmcnt|lgkmcnt)\((@[^)]*)\)',rep,t)
            out.append(t); continue
        tag=None
        if ';@' in t: t,tag=t.split(';@'); t=t.rstrip(); tag=tag.strip()
        k=Ins(t).kind
        if tag!='opt':
            if k in ('dma','vld','vst'): vm.append(tag)
            if k in ('dsr','dsw'): ds.append(tag)
        out.append(t)
    return out
```

```python
from asmlib import *
KA=dict(xa=0,lre=8,lim=16,bre=24,bim=32,cre=40,cim=48,ldt=56,dsk=64,xb=72,ckv=80,wq=88,wuk=96,wuv=104,wo=112,out=120,dbg=128,ws=136)
MB=1<<20
WS_KV=0; WS_CTX=32*MB; WS_H=48*MB; WS_WO=52*MB; WS_C=56*MB; WS_E=57*MB; WS_END=58*MB
B0=96.0
VSCALE=2.0**64
THR=2.0**-30

class Code:
    def __init__(s): s.L=[]
    def __call__(s,*t):
        for x in t:
            if isinstance(x,(list,tuple)): s.L.extend(x)
            else: s.L.append(x)
    def srd(s, d, base, nbytes):
        s(f"s_mov_b32 s{d}, s{base}", f"s_and_b32 s{d+1}, s{base+1}, 0xffff", f"s_mov_b32 s{d+2}, {hex(nbytes)}", f"s_mov_b32 s{d+3}, 0x20000")

def kernel_head(name):
    return [f".globl {name}",".p2align 8",f".type {name},@function",f"{name}:"]
def kernel_desc(name):
    return ['.section .rodata,"a"',".p2align 6",f".amdhsa_kernel {name}","  .amdhsa_next_free_vgpr 512","  .amdhsa_next_free_sgpr 102",
            "  .amdhsa_accum_offset 256","  .amdhsa_group_segment_fixed_size 0","  .amdhsa_kernarg_size 144","  .amdhsa_user_sgpr_count 2",
            "  .amdhsa_user_sgpr_kernarg_segment_ptr 1","  .amdhsa_system_sgpr_workgroup_id_x 1",".end_amdhsa_kernel",".text"]
def cmul(dr,di,ar,ai,br,bi,cr=None,ci=None):
    if cr is None:
        return [f"v_mul_f32 v{dr}, v{ar}, v{br}", f"v_mul_f32 v{di}, v{ar}, v{bi}",
                f"v_fma_f32 v{dr}, -v{ai}, v{bi}, v{dr}", f"v_fma_f32 v{di}, v{ai}, v{br}, v{di}"]
    return [f"v_fma_f32 v{dr}, v{ar}, v{br}, v{cr}", f"v_fma_f32 v{di}, v{ar}, v{bi}, v{ci}",
            f"v_fma_f32 v{dr}, -v{ai}, v{bi}, v{dr}", f"v_fma_f32 v{di}, v{ai}, v{br}, v{di}"]
def verify(lines,name):
    e=check_hazards(lines,name)+check_waits(lines,name)
    if e:
        print("\n".join(e[:30])); raise Exception(f"{name}: {len(e)} problems")

def code_prefetch(lbl, sp, vt, vd, n):
    o=[f"s_getpc_b64 s[{sp}:{sp+1}]", f"{lbl}:", f"v_lshlrev_b32 v{vt}, 7, v0"]
    for i in range(n):
        if i: o.append(f"v_add_u32 v{vt}, 0x8000, v{vt}")
        o+=[f"v_min_u32 v{vt}, L_text_end-{lbl}-4, v{vt}", f"global_load_dword v{vd}, v{vt}, s[{sp}:{sp+1}]"]
    return o

import os
DIAG=int(os.environ.get('DIAG','0'))
WS_ST=64*MB
WS_SIZE=WS_END if not DIAG else 80*MB
def stamp(k,vST,force=False):
    if not DIAG or (DIAG>=2 and 10<k<30 and not force): return []
    return ["s_memrealtime s[98:99]","s_memtime s[100:101]","s_waitcnt lgkmcnt(0)",f"v_writelane_b32 v{vST}, s98, {k}",f"v_writelane_b32 v{vST}, s100, {32+k}"]
def stamp_out(kid,vST,sWS,sW,vL):
    if not DIAG: return []
    return [f"s_lshl_b32 s98, s2, 2", f"s_add_u32 s98, s98, s{sW}", f"s_add_u32 s98, s98, {kid*1024}", "s_lshl_b32 s98, s98, 8", f"s_add_u32 s98, s98, {WS_ST}",
            f"v_lshlrev_b32 v{vL}, 2, v{vL}", f"buffer_store_dword v{vST}, v{vL}, s[{sWS}:{sWS+3}], s98 offen"]
```

```python
import sys, importlib
from common import *
NAME='concat_heads__ssm_conv_s5__compressed_kv_cla__prompt'
def build(mod, path):
    ref=open(f'cdna_kernels/{NAME}.s.ref').read().split('\n')
    head=[l for l in ref if l.startswith(';') and '@launch' not in l]
    m=importlib.import_module(mod)
    L=list(head)+[f"; @launch grid=(256,1,1) block=(256,1,1) lds={m.LDS}", '.amdgcn_target "amdgcn-amd-amdhsa--gfx950"','.text']
    L+=m.gen(NAME+'_kernel')+["s_endpgm","L_text_end:"]
    open(path,'w').write("\n".join(L)+"\n")
if __name__=='__main__': build(sys.argv[1], sys.argv[2])
```

```python
import re, random

REG_RE = re.compile(r'^(-|abs\()?([vas])(?:(\d+)|\[(\d+):(\d+)\])\)?$')
def regs_of(op):
    op = op.strip()
    if op in ('vcc','vcc_lo','vcc_hi'): return {('s','vcc')}
    if op == 'exec': return {('s','exec')}
    if op == 'm0': return {('s','m0')}
    m = REG_RE.match(op)
    if not m: return set()
    f = m.group(2)
    if m.group(3) is not None: return {(f,int(m.group(3)))}
    return {(f,i) for i in range(int(m.group(4)), int(m.group(5))+1)}

TRANS = ('v_exp_f32','v_log_f32','v_rcp_f32','v_rsq_f32','v_sqrt_f32','v_sin_f32','v_cos_f32')
class Ins:
    __slots__=('text','op','kind','rd','wr','ops','cin')
    def __init__(s, text):
        s.text = text
        t = text.split(';')[0].strip()
        if t.endswith(':') or t.startswith('.') or not t:
            s.op=t; s.kind='label'; s.rd=set(); s.wr=set(); s.ops=[]; s.cin=set(); return
        parts = t.split(None,1)
        s.op = op = parts[0]
        rest = parts[1] if len(parts)>1 else ''
        ops = [x.strip() for x in rest.split(',')] if rest else []
        mods = []
        if ops:
            last = ops[-1].split()
            ops[-1] = last[0]; mods = last[1:]
        s.ops = ops
        R = [regs_of(o) for o in ops]
        U = lambda l: set().union(*l) if l else set()
        s.cin = set()
        if op.startswith('v_mfma'):
            s.kind='mfma'; s.wr=R[0]; s.rd=U(R[1:]); s.cin=R[3]
        elif op.startswith('ds_read'):
            s.kind='dsr'; s.wr=R[0]; s.rd=U(R[1:])
        elif op.startswith('ds_write'):
            s.kind='dsw'; s.wr=set(); s.rd=U(R)
        elif op.startswith('buffer_load') or op.startswith('global_load'):
            if 'lds' in mods:
                s.kind='dma'; s.wr=set(); s.rd=U(R)|{('s','m0')}
            else:
                s.kind='vld'; s.wr=R[0]; s.rd=U(R[1:])
        elif op.startswith('buffer_store') or op.startswith('global_store'):
            s.kind='vst'; s.wr=set(); s.rd=U(R)
        elif op.startswith('buffer_atomic'):
            s.kind='vld' if 'sc0' in mods else 'vst'; s.wr=R[0] if 'sc0' in mods else set(); s.rd=U(R)
        elif op.startswith('global_atomic'):
            if 'sc0' in mods: s.kind='vld'; s.wr=R[0]; s.rd=U(R[1:])
            else: s.kind='vst'; s.wr=set(); s.rd=U(R)
        elif op in ('buffer_inv','buffer_wbl2'):
            s.kind='vst'; s.wr=set(); s.rd=set()
        elif op=='s_waitcnt':
            s.kind='wait'; s.wr=set(); s.rd=set()
        elif op=='s_barrier':
            s.kind='bar'; s.wr=set(); s.rd=set()
        elif op=='s_nop':
            s.kind='nop'; s.wr=set(); s.rd=set()
        elif op.startswith('s_cbranch') or op in ('s_branch','s_endpgm','s_setprio','s_sleep'):
            s.kind='br'; s.wr=set(); s.rd={('s','vcc')} if 'vcc' in op else set()
        elif op.startswith('s_load') or op.startswith('s_mem'):
            s.kind='smem'; s.wr=R[0]; s.rd=U(R[1:])
        elif op.startswith('s_cmp') or op.startswith('s_bitcmp'):
            s.kind='salu'; s.wr=set(); s.rd=U(R)
        elif op.startswith('s_'):
            s.kind='salu'; s.wr=R[0] if R else set(); s.rd=U(R[1:])
        elif op.startswith('v_'):
            s.kind='trans' if op.replace('_e32','').replace('_e64','') in TRANS else 'valu'
            s.wr=R[0]; s.rd=U(R[1:])
            if op.startswith('v_fmac') or op.startswith('v_pk_fmac'): s.rd|=R[0]
            if op.startswith('v_permlane') and 'swap' in op: s.wr=R[0]|R[1]; s.rd=R[0]|R[1]
            if op.startswith('v_add_co') or op.startswith('v_addc_co') or op.startswith('v_sub_co'):
                s.wr=R[0]|R[1]; s.rd=U(R[2:])
        else:
            raise Exception('unknown op '+text)
    def states(s):
        if s.kind=='label': return 0
        if s.kind=='nop': return int(s.ops[0])+1
        return 1

def isv(rs): return {r for r in rs if r[0] in 'va'}
def iss(rs): return {r for r in rs if r[0]=='s'}

def need_states(p, c):
    n=0
    pv = p.kind in ('valu','trans'); cv = c.kind in ('valu','trans')
    cmem = c.kind in ('dsr','dsw','dma','vld','vst')
    if pv:
        if c.kind=='mfma' and isv(p.wr)&c.rd: n=max(n,2)
        if p.kind=='trans' and c.kind=='valu' and p.wr&c.rd: n=max(n,1)
        if cv and iss(p.wr)&c.rd: n=max(n,2)
        if c.kind in ('dma','vld','vst') and iss(p.wr)&c.rd: n=max(n,5)
        if cv and c.op.startswith('v_permlane') and p.wr&c.rd: n=max(n,2)
        if cv and c.op.startswith('v_read') and isv(p.wr)&c.rd: n=max(n,1)
        if cv and 'dpp' in c.text and p.wr&c.rd: n=max(n,2)
        if c.kind=='salu' and iss(p.wr)&c.rd: n=max(n,1)
    if p.kind=='mfma':
        assert '16x16x32' in p.op
        if c.kind=='mfma':
            if p.wr & (regs_of(c.ops[1])|regs_of(c.ops[2])): n=max(n,8)
            if p.wr & c.cin and p.wr!=c.cin: n=max(n,6)
        if (cv or cmem) and p.wr&(c.rd|c.wr): n=max(n,8)
        if cv and p.cin&c.wr: n=max(n,3)
    if p.kind=='salu' and ('s','m0') in p.wr and c.kind=='dma': n=max(n,1)
    if p.kind=='vst' and ('x4' in p.op or 'x3' in p.op):
        d = regs_of(p.ops[0]) if p.op.startswith('buffer') else regs_of(p.ops[1])
        if d & c.wr and c.kind not in ('dsr','vld'): n=max(n,2)
    if p.kind=='dsw' and 'b128' in p.op and regs_of(p.ops[1])&c.wr and cv: n=max(n,2)
    return n

def check_hazards(lines, name=''):
    ins=[l if isinstance(l,Ins) else Ins(l) for l in lines]
    errs=[]
    for i,c in enumerate(ins):
        if c.kind in ('label','nop','wait','bar'): continue
        d=0
        for j in range(i-1,max(-1,i-14),-1):
            p=ins[j]
            n=need_states(p,c)
            if n>d: errs.append(f"{name}: hazard need {n} have {d}: [{j}] {p.text}  ->  [{i}] {c.text}")
            d+=p.states()
            if d>=9: break
    return errs

def fix_hazards(lines):
    out=[]
    for l in lines:
        c=Ins(l)
        if c.kind not in ('label','nop','wait','bar'):
            d=0; add=0
            for p in reversed(out[-14:]):
                n=need_states(p,c)
                add=max(add,n-d)
                d+=p.states()
                if d>=9: break
            if add>0: out.append(Ins(f"s_nop {add-1}"))
        out.append(c)
    return [o.text for o in out]

WAIT_RE=re.compile(r'(vmcnt|lgkmcnt)\((\d+)\)')
def check_waits(lines, name=''):
    ins=[l if isinstance(l,Ins) else Ins(l) for l in lines]
    ds=[]; vm=[]; errs=[]; smem=False
    for i,c in enumerate(ins):
        if c.kind=='wait':
            for k,n in WAIT_RE.findall(c.text):
                n=int(n)
                if k=='lgkmcnt':
                    if smem and n>0: pass
                    else:
                        ds=ds[len(ds)-n:] if n<len(ds) and n>0 else ([] if n==0 else ds)
                        if n==0: smem=False
                else: vm=vm[len(vm)-n:] if n<len(vm) and n>0 else ([] if n==0 else vm)
            continue
        use=c.rd|c.wr
        for q in (ds,vm):
            for p in q:
                if p.wr&use and not (p.kind==c.kind and not (p.wr&c.rd)):
                    errs.append(f"{name}: unwaited: {p.text} -> [{i}] {c.text}")
        if c.kind in ('dsr','dsw'): ds.append(c)
        if c.kind=='smem': ds.append(c); smem=True
        if c.kind in ('dma','vld','vst'): vm.append(c)
        if len(vm)>63: errs.append(f"{name}: vmcnt overflow at [{i}] {c.text}")
    return errs

class Gap:
    def __init__(s): s.sh=None; s.m=None; s.d=[]; s.v=[]; s.post=[]
def _match(items, slots_of):
    owner={}
    def tryi(i,seen):
        for s in slots_of(i):
            if s in seen: continue
            seen.add(s)
            if s not in owner or tryi(owner[s],seen):
                owner[s]=i; return True
        return False
    for i in items:
        if not tryi(i,set()): return None
    return {i:s for s,i in owner.items()}

def place(n, fillers, tries=400, seed=0, cyclic=True, good=40):
    rnd=random.Random(seed)
    big=[i for i,f in enumerate(fillers) if f[0] in 'em']
    small=[i for i,f in enumerate(fillers) if f[0] in 'dv']
    sc=[i for i,f in enumerate(fillers) if f[0]=='s']
    for f in fillers:
        assert f[2]<=f[3], f
        if not cyclic: assert 0<=f[2] and f[3]<n, f
    fixed_s={f[2]%n for f in fillers if f[0]=='s' and f[2]==f[3]}
    best=None
    for tr in range(tries):
        def bs(i):
            c=[g%n for g in range(fillers[i][2],fillers[i][3]+1)]
            if fillers[i][0]=='m': c=[g for g in c if g not in fixed_s]
            if tr: rnd.shuffle(c)
            return c
        cache={i:bs(i) for i in big}
        mb=_match(sorted(big,key=lambda i:len(cache[i])), lambda i:cache[i])
        if mb is None: raise Exception("big items infeasible")
        taken=set(mb.values())
        mg=set(mb[i] for i in big if fillers[i][0]=='m')
        def ss(i):
            k,_,lo,hi=fillers[i][:4]
            c=[g%n for g in range(lo,hi+1) if g%n not in taken]
            a,b=(0,1) if k=='d' else (1,0)
            return [(g,a) for g in c]+[(g,b) for g in c]
        cs={i:ss(i) for i in small}
        ms=_match(small, lambda i:cs[i])
        if ms is None: continue
        msc=_match(sc, lambda i:[g%n for g in range(fillers[i][2],fillers[i][3]+1) if g%n not in mg])
        if msc is None: continue
        cnt={}
        for i in small:
            key=(ms[i][0],fillers[i][0]); cnt[key]=cnt.get(key,0)+1
        ndd=sum(1 for v in cnt.values() if v>1)
        if best is None or ndd<best[0]: best=(ndd,mb,ms,msc)
        if ndd==0 or tr>good: break
    if best is None: raise Exception("cannot schedule")
    ndd,mb,ms,msc=best
    res={}
    def unwrap(i,g):
        lo=fillers[i][2]
        while g<lo: g+=n
        while g-n>=lo: g-=n
        return g
    for i,g in mb.items(): res[i]=unwrap(i,g)
    for i,(g,_) in ms.items(): res[i]=unwrap(i,g)
    for i,g in msc.items(): res[i]=unwrap(i,g)
    ch={}
    for i,f in enumerate(fillers):
        if len(f)>4 and f[4] is not None: ch.setdefault((f[4],f[0]),[]).append(i)
    for c,l in ch.items():
        ps=sorted(res[i] for i in l)
        for i,p in zip(l,ps):
            assert fillers[i][2]<=p<=fillers[i][3],(fillers[i],p)
            res[i]=p
    gaps=[Gap() for _ in range(n)]
    for i,f in enumerate(fillers):
        G=gaps[res[i]%n]; k=f[0]; key=(-(res[i]//n),i)
        if k=='s': G.sh=f[1]
        elif k=='m': G.m=f[1]
        elif k=='d': G.d.append((key,f[1]))
        else: G.v.append((key,f[1]))
    return gaps,res

def flat(x):
    return x if isinstance(x,list) else [x]
def emit(mf,gaps):
    out=[]
    for m,G in zip(mf,gaps):
        out.append(m)
        if G.sh: out+=flat(G.sh)
        if G.m: out+=flat(G.m)
        for _,t in sorted(G.d): out+=flat(t)
        for _,t in sorted(G.v): out+=flat(t)
        out+=G.post
    return out

def insert_lgkm(mf, gaps, pending=(), cyclic=False, age=5):
    n=len(mf)
    seq=[]
    if cyclic:
        for g in range(n):
            for _,t in sorted(gaps[g].d):
                for tt in flat(t): seq.append((g-n,Ins(tt)))
    else:
        seq=[(-100,Ins(t)) for t in pending]
    done=0
    if cyclic: done=0
    def existing_wait(G):
        if G.sh:
            for t in flat(G.sh):
                m=re.search(r'lgkmcnt\((\d+)\)',t)
                if m: return int(m.group(1))
        return None
    for m in range(n):
        I=Ins(mf[m])
        need=-1
        for k in range(done,len(seq)):
            if seq[k][1].wr & I.rd: need=k
        if need>=0:
            loc=None
            for g in range(m-1,max(m-4,-1),-1):
                if seq[need][0]>=g: break
                if gaps[g].sh is None and gaps[g].m is None: loc=g; break
            if loc is not None:
                issued=len([1 for k in range(len(seq)) if seq[k][0]<loc])
                cover=need
                for k in range(need,issued):
                    if seq[k][0]<=loc-age: cover=k
                c=min(issued-1-cover,15)
                gaps[loc].sh=f"s_waitcnt lgkmcnt({c})"
                done=issued-c
            else:
                assert m>0 or cyclic, "need wait before first mfma"
                issued=len(seq)
                cover=need
                for k in range(need,issued):
                    if seq[k][0]<=m-1-age: cover=k
                c=min(issued-1-cover,15)
                gaps[(m-1)%n].post.append(f"s_waitcnt lgkmcnt({c})")
                done=issued-c
        w=existing_wait(gaps[m])
        if w is not None: done=max(done,len(seq)-w)
        for _,t in sorted(gaps[m].d):
            for tt in flat(t): seq.append((m,Ins(tt)))
    return [s[1].text for s in seq[done:]]

def r(f,s,n=1): return f"{f}{s}" if n==1 else f"{f}[{s}:{s+n-1}]"
def mf16(d,a,b,c): return f"v_mfma_f32_16x16x32_bf16 {d}, {a}, {b}, {c}"
import struct
def f2u(x): return struct.unpack('<I',struct.pack('<f',x))[0]
def fh(x): return hex(f2u(x))

def kind_of(t):
    if isinstance(t,list): return 'G'
    I=Ins(re.sub(r'@\w+','0',t.split(';')[0]))
    k=I.kind
    if k=='valu': return 'v'
    if k=='trans': return 'e'
    if k=='dsr': return 'd'
    if k=='dsw': return 'D'
    if k in ('dma','vld','vst'): return 'm'
    return 's'
_seq=[0]
MARK={}
def used(G):
    if G.m is not None: return 2
    u=len(G.d)
    for _,t in G.v: u+= 2 if (not isinstance(t,list) and kind_of(t)=='e') else 1
    for _,t in G.d:
        if kind_of(t)=='D': u+=1
    return u+2*bool(G.post)
def weave(gaps, q, lo=0, hi=None, cap=2, loose=False):
    hi=len(gaps) if hi is None else hi
    q=list(q); g=lo; rank=-1
    while q and g<hi:
        t=q[0]
        if isinstance(t,tuple):
            if t[0]=='mark': MARK[t[1]]=g; q.pop(0); continue
            ng = t[1] if t[0]=='after' else (MARK[t[1]]+1 if t[0]=='need' else g+t[1])
            if ng>g: g=ng; rank=-1
            q.pop(0); continue
        G=gaps[g]; k=kind_of(t); u=used(G); ok=False
        _seq[0]+=1; key=(1,_seq[0])
        if k=='s':
            if G.sh is None and G.m is None and rank<0: G.sh=t; rank=0; ok=True
            elif u<cap or (u<2 and rank<0): G.v.append((key,t)); rank=3; ok=True
        elif k=='m':
            if (u==0 or (loose and u==1 and len(G.d)==1)) and G.sh is None and rank<0: G.m=t; rank=4; ok=True
        elif k=='d':
            if u<cap and rank<=2 and (len(G.d)==0 or loose): G.d.append((key,t)); rank=2; ok=True
        elif k=='D':
            if u==0 and rank<=2: G.d.append((key,t)); rank=4; ok=True
        elif k=='v':
            if u<cap and rank<=3: G.v.append((key,t)); rank=3; ok=True
        elif k=='e':
            if u==0 and rank<=3: G.v.append((key,t)); rank=4; ok=True
        elif k=='G':
            if u==0: G.post=list(t); rank=4; ok=True
        if ok: q.pop(0)
        else: g+=1; rank=-1
    while q and isinstance(q[0],tuple) and q[0][0]=='mark': MARK[q[0][1]]=g; q.pop(0)
    return q
def flush(q):
    o=[]
    for t in q:
        if isinstance(t,tuple): continue
        o+=flat(t)
    return o
def resolve_waits(L):
    out=[]; vm=[]; ds=[]; waited=set()
    for t in L:
        if t.startswith('s_waitcnt') and '@' in t.split(';')[0]:
            def rep(m):
                q,mx=(vm,63) if m.group(1)=='vmcnt' else (ds,15)
                n=mx
                for tag in m.group(2).split(','):
                    idx=[i for i,x in enumerate(q) if x==tag.strip()[1:]]
                    assert idx,(t,tag)
                    waited.add(tag.strip()[1:])
                    n=min(n,len(q)-1-idx[-1])
                return f"{m.group(1)}({n})"
            t=re.sub(r'(vmcnt|lgkmcnt)\((@[^)]*)\)',rep,t)
            out.append(t); continue
        tag=None
        if ';@' in t: t,tag=t.split(';@'); t=t.rstrip(); tag=tag.strip()
        k=Ins(t).kind
        assert tag not in waited,('op issued after its wait',t,tag)
        if tag!='opt':
            if k in ('dma','vld','vst'): vm.append(tag)
            if k in ('dsr','dsw'): ds.append(tag)
        out.append(t)
    return out
```

```python
from asmlib import *
KA=dict(xa=0,lre=8,lim=16,bre=24,bim=32,cre=40,cim=48,ldt=56,dsk=64,xb=72,ckv=80,wq=88,wuk=96,wuv=104,wo=112,out=120,dbg=128,ws=136)
MB=1<<20
WS_KV=0; WS_CTX=32*MB; WS_H=48*MB; WS_WO=52*MB; WS_C=56*MB; WS_E=57*MB; WS_P=58*MB; WS_END=74*MB
B0=96.0
VSCALE=2.0**64
THR=2.0**-30

class Code:
    def __init__(s): s.L=[]
    def __call__(s,*t):
        for x in t:
            if isinstance(x,(list,tuple)): s.L.extend(x)
            else: s.L.append(x)
    def srd(s, d, base, nbytes):
        s(f"s_mov_b32 s{d}, s{base}", f"s_and_b32 s{d+1}, s{base+1}, 0xffff", f"s_mov_b32 s{d+2}, {hex(nbytes)}", f"s_mov_b32 s{d+3}, 0x20000")

def kernel_head(name):
    return [f".globl {name}",".p2align 8",f".type {name},@function",f"{name}:"]
def kernel_desc(name):
    return ['.section .rodata,"a"',".p2align 6",f".amdhsa_kernel {name}","  .amdhsa_next_free_vgpr 512","  .amdhsa_next_free_sgpr 102",
            "  .amdhsa_accum_offset 256","  .amdhsa_group_segment_fixed_size 0","  .amdhsa_kernarg_size 144","  .amdhsa_user_sgpr_count 2",
            "  .amdhsa_user_sgpr_kernarg_segment_ptr 1","  .amdhsa_system_sgpr_workgroup_id_x 1",".end_amdhsa_kernel",".text"]
def cmul(dr,di,ar,ai,br,bi,cr=None,ci=None):
    if cr is None:
        return [f"v_mul_f32 v{dr}, v{ar}, v{br}", f"v_mul_f32 v{di}, v{ar}, v{bi}",
                f"v_fma_f32 v{dr}, -v{ai}, v{bi}, v{dr}", f"v_fma_f32 v{di}, v{ai}, v{br}, v{di}"]
    return [f"v_fma_f32 v{dr}, v{ar}, v{br}, v{cr}", f"v_fma_f32 v{di}, v{ar}, v{bi}, v{ci}",
            f"v_fma_f32 v{dr}, -v{ai}, v{bi}, v{dr}", f"v_fma_f32 v{di}, v{ai}, v{br}, v{di}"]
def verify(lines,name):
    e=check_hazards(lines,name)+check_waits(lines,name)
    if e:
        print("\n".join(e[:30])); raise Exception(f"{name}: {len(e)} problems")

def code_prefetch(lbl, sp, vt, vd, n):
    o=[f"s_getpc_b64 s[{sp}:{sp+1}]", f"{lbl}:", f"v_lshlrev_b32 v{vt}, 7, v0"]
    for i in range(n):
        if i: o.append(f"v_add_u32 v{vt}, 0x8000, v{vt}")
        o+=[f"v_min_u32 v{vt}, L_text_end-{lbl}-4, v{vt}", f"global_load_dword v{vd}, v{vt}, s[{sp}:{sp+1}]"]
    return o

import os
DIAG=int(os.environ.get('DIAG','0'))
WS_ST=80*MB
WS_SIZE=WS_END if not DIAG else 96*MB
PADAT=int(os.environ.get('PADAT','-1')); PADX=int(os.environ.get('PADX','0'))
def stamp(k,vST,force=False):
    if PADAT>=0 and k==0: return ["s_memrealtime s[96:97]"]
    if k==PADAT: return ["L_padx:","s_memrealtime s[98:99]","s_waitcnt lgkmcnt(0)","s_sub_u32 s98, s98, s96",f"s_cmp_lt_u32 s98, {PADX}","s_cbranch_scc1 L_padx"]
    if not DIAG or (DIAG>=2 and 10<k<30 and not force): return []
    return ["s_memrealtime s[98:99]","s_memtime s[100:101]","s_waitcnt lgkmcnt(0)",f"v_writelane_b32 v{vST}, s98, {k}",f"v_writelane_b32 v{vST}, s100, {32+k}"]
def stamp_out(kid,vST,sWS,sW,vL):
    if not DIAG: return []
    return [f"s_lshl_b32 s98, s2, 2", f"s_add_u32 s98, s98, s{sW}", f"s_add_u32 s98, s98, {kid*1024}", "s_lshl_b32 s98, s98, 8", f"s_add_u32 s98, s98, {WS_ST}",
            f"v_lshlrev_b32 v{vL}, 2, v{vL}", f"buffer_store_dword v{vST}, v{vL}, s[{sWS}:{sWS+3}], s98 offen"]
```
